```python
import torch

def _softmax(x, axis=-1):
    return torch.softmax(x, dim=axis)
def _gelu(x):
    return torch.nn.functional.gelu(x, approximate="tanh")
def _silu(x):
    return torch.nn.functional.silu(x)
def _sigmoid(x):
    return torch.sigmoid(x)
def _layernorm(x, axis=-1, eps=1e-5):
    m = x.mean(dim=axis, keepdim=True)
    v = x.var(dim=axis, keepdim=True, unbiased=False)
    return (x - m) / torch.sqrt(v + eps)
def _scatter_add(tgt, idx, src, axis=0):
    return tgt.clone().index_add_(axis, idx, src)
def _segment_sum(src, seg, n):
    out = torch.zeros((n,) + src.shape[1:], dtype=src.dtype)
    return out.index_add_(0, seg, src)
def _pad(x, pw):
    flat = tuple(v for pair in reversed(pw) for v in pair)
    return torch.nn.functional.pad(x, flat)

kernel_name = 'standalone__gqa_block_cached__near_ridge'

def setup_inputs():

    _w = (lambda a: (lambda t: t.to(torch.bfloat16) if t.is_floating_point() else t)(torch.as_tensor(a)))
    B, Sq, D = 16, 64, 640
    Hq, Hkv, Sk, Dh = 32, 32, 64, 128
    assert Hq % Hkv == 0, (Hq, Hkv)
    return {
        "x": _w((lambda *s: torch.randn(*s, dtype=torch.bfloat16) * 0.8)(B, Sq, D)),
        "k_cache": _w((lambda *s: torch.randn(*s, dtype=torch.bfloat16) * 0.8)(B, Hkv, Sk, Dh)),
        "v_cache": _w((lambda *s: torch.randn(*s, dtype=torch.bfloat16) * 0.05)(B, Hkv, Sk, Dh)),
        "wq": _w((lambda *s: torch.randn(*s, dtype=torch.bfloat16) * 0.8)(D, Hq * Dh) * (D ** -0.5)),
        "wo": _w((lambda *s: torch.randn(*s, dtype=torch.bfloat16) * 0.05)(Hq * Dh, D) * ((Hq * Dh) ** -0.5)),
    }

def reference(x, k_cache, v_cache, wq, wo):
    B, Sq, D = x.shape
    Hq, Dh = 32, 128
    Hkv = k_cache.shape[1]
    rep = Hq // Hkv
    q = (lambda x, *d: x.permute(*d))((x @ wq).reshape(B, Sq, Hq, Dh), 0, 2, 1, 3)
    k = (lambda x, n, axis: torch.repeat_interleave(x, n, dim=axis))(k_cache, rep, axis=1)
    v = (lambda x, n, axis: torch.repeat_interleave(x, n, dim=axis))(v_cache, rep, axis=1)
    scores = torch.einsum("bhqd,bhkd->bhqk", q, k) * (Dh ** -0.5)
    p = _softmax(scores, axis=-1)
    o = torch.einsum("bhqk,bhkd->bhqd", p, v)
    return (lambda x, *d: x.permute(*d))(o, 0, 2, 1, 3).reshape(B, Sq, Hq * Dh) @ wo
```

```python
class Asm:
    def __init__(self):
        self.lines = []
    def e(self, s):
        for ln in s.strip("\n").split("\n"):
            ln = ln.strip()
            if ln:
                self.lines.append("    " + ln)
    def label(self, l):
        self.lines.append(l + ":")
    def raw(self, s):
        self.lines.append(s)
    def c(self, s):
        self.lines.append("    ; " + s)
    def text(self):
        return "\n".join(self.lines) + "\n"

def vr(b, n=1):
    return f"v{b}" if n == 1 else f"v[{b}:{b+n-1}]"
def ar(b, n=1):
    return f"a{b}" if n == 1 else f"a[{b}:{b+n-1}]"
def sr(b, n=1):
    return f"s{b}" if n == 1 else f"s[{b}:{b+n-1}]"

HEADER = """; Kernarg layout (64 bytes, ptrs only, base s[0:1]):
"""

X_BYTES = 16*64*640*2
KV_BYTES = 16*32*64*128*2
W_BYTES = 640*4096*2
OUT_BYTES = X_BYTES

def kernel_begin(a, name):
    a.raw(".text")
    a.raw(f".globl {name}")
    a.raw(".p2align 8")
    a.raw(f".type {name},@function")
    a.label(name)

def kernel_desc(a, name, vgpr, accum, sgpr=102):
    a.raw('.section .rodata,"a"')
    a.raw(".p2align 6")
    a.raw(f".amdhsa_kernel {name}")
    a.raw(f"  .amdhsa_next_free_vgpr {vgpr}")
    a.raw(f"  .amdhsa_next_free_sgpr {sgpr}")
    a.raw(f"  .amdhsa_accum_offset {accum}")
    a.raw("  .amdhsa_group_segment_fixed_size 0")
    a.raw("  .amdhsa_kernarg_size 64")
    a.raw("  .amdhsa_user_sgpr_count 2")
    a.raw("  .amdhsa_user_sgpr_kernarg_segment_ptr 1")
    a.raw("  .amdhsa_system_sgpr_workgroup_id_x 1")
    a.raw("  .amdhsa_float_denorm_mode_32 3")
    a.raw(".end_amdhsa_kernel")

def srd(a, s, base_lo, nbytes):
    a.e(f"s_mov_b32 s{s}, s{base_lo}")
    a.e(f"s_mov_b32 s{s+1}, s{base_lo+1}")
    a.e(f"s_mov_b32 s{s+2}, {nbytes}")
    a.e(f"s_mov_b32 s{s+3}, 0x20000")
```

```python
import sys
from common import *

STAMP = True

def stamp_begin(a, sdbg, st0, tmp):
    if STAMP:
        a.e(f"s_memrealtime s[{st0}:{st0+1}]")

def stamp_end(a, sdbg, st0, st1, v0, v1, slot):
    if not STAMP: return
    a.e(f"s_memrealtime s[{st1}:{st1+1}]")
    a.e("s_waitcnt lgkmcnt(0)")
    a.e(f"s_not_b32 s{st0}, s{st0}")
    a.e(f"v_mov_b32 v{v0}, s{st0}")
    a.e(f"v_mov_b32 v{v1}, s{st1}")
    a.e(f"v_mov_b32 v{v1+1}, {slot*4}")
    a.e(f"v_mov_b32 v{v1+2}, {slot*4+4}")
    a.e("s_mov_b64 exec, 1")
    a.e(f"buffer_atomic_umax v{v0}, v{v1+1}, s[{sdbg}:{sdbg+3}], 0 offen")
    a.e(f"buffer_atomic_umax v{v1}, v{v1+2}, s[{sdbg}:{sdbg+3}], 0 offen")
    a.e("s_mov_b64 exec, -1")

def load_kernargs(a):
    a.e("s_load_dwordx4 s[4:7], s[0:1], 0")
    a.e("s_load_dwordx4 s[8:11], s[0:1], 16")
    a.e("s_load_dwordx4 s[12:15], s[0:1], 32")
    a.e("s_load_dwordx4 s[16:19], s[0:1], 48")

WS_O_BYTES = 1024*4096*2

def p1(a):
    name = "p1_kernel"
    kernel_begin(a, name)
    a.e("s_cmp_ge_u32 s2, 256")
    a.e("s_cbranch_scc1 P1_END")
    load_kernargs(a)
    stamp_begin(a, None, 60, None)
    SX, SK, SV, SWQ, SWS, SDBG = 20, 24, 28, 32, 36, 40
    vL, vT0, vT1, vT2, vT3 = 1, 2, 3, 4, 5
    a.e(f"v_and_b32 v{vL}, 63, v0")
    a.e(f"v_lshrrev_b32 v{vT0}, 6, v0")
    a.e("s_nop 0")
    sW, sH, sP = 44, 45, 46
    a.e(f"v_readfirstlane_b32 s{sW}, v{vT0}")
    a.e(f"s_and_b32 s3, s2, 7")
    a.e(f"s_lshr_b32 s47, s2, 3")
    a.e(f"s_and_b32 s{sH}, s47, 3")
    a.e(f"s_lshl_b32 s3, s3, 2")
    a.e(f"s_add_u32 s{sH}, s{sH}, s3")
    a.e(f"s_lshr_b32 s{sP}, s47, 2")
    a.e("s_waitcnt lgkmcnt(0)")
    srd(a, SX, 4, X_BYTES); srd(a, SK, 6, KV_BYTES); srd(a, SV, 8, KV_BYTES); srd(a, SWQ, 10, W_BYTES)
    srd(a, SWS, 18, WS_O_BYTES); srd(a, SDBG, 16, 256)
    vXo = [8, 9, 10, 11]; vWo = [12, 13, 14, 15]; vKo = [16, 17, 18, 19]; vVo = 20
    l3, l4, l7, l15 = 21, 22, 23, 24
    a.e(f"v_lshrrev_b32 v{l3}, 3, v{vL}")
    a.e(f"v_lshrrev_b32 v{l4}, 4, v{vL}")
    a.e(f"v_and_b32 v{l7}, 7, v{vL}")
    a.e(f"v_and_b32 v{l15}, 15, v{vL}")
    a.e(f"s_lshl_b32 s48, s{sW}, 5")
    a.e(f"s_mov_b32 s49, 1280")
    for i in range(4):
        a.e(f"v_add_u32 v{vT0}, s48, v{l3}")
        a.e(f"v_add_u32 v{vT0}, {8*i}, v{vT0}")
        a.e(f"v_mul_lo_u32 v{vT0}, v{vT0}, s49")
        a.e(f"v_add_u32 v{vT1}, {4*(i&1)}, v{l4}")
        a.e(f"v_xor_b32 v{vT1}, v{vT1}, v{l7}")
        a.e(f"v_lshlrev_b32 v{vT1}, 4, v{vT1}")
        a.e(f"v_add_u32 v{vT0}, v{vT0}, v{vT1}")
        a.e(f"v_subrev_u32 v{vXo[i]}, {1024*i}, v{vT0}")
    a.e(f"s_lshl_b32 s48, s{sW}, 4")
    a.e(f"v_lshlrev_b32 v{vT2}, 2, v{l4}")
    a.e(f"v_xor_b32 v{vT2}, v{vT2}, v{l15}")
    a.e(f"v_lshlrev_b32 v{vT2}, 4, v{vT2}")
    for i in range(4):
        a.e(f"v_add_u32 v{vT0}, s48, v{l4}")
        a.e(f"v_add_u32 v{vT0}, {4*i}, v{vT0}")
        a.e(f"v_lshlrev_b32 v{vT0}, 13, v{vT0}")
        a.e(f"v_add_u32 v{vT0}, v{vT0}, v{vT2}")
        a.e(f"v_subrev_u32 v{vWo[i]}, {1024*i}, v{vT0}")
    a.e(f"v_lshlrev_b32 v{vT0}, 8, v{l4}")
    a.e(f"v_add_u32 v{vVo}, v{vT0}, v{vT2}")
    for i in range(4):
        a.e(f"v_add_u32 v{vT1}, {4*i}, v{l4}")
        a.e(f"v_xor_b32 v{vT1}, v{vT1}, v{l15}")
        a.e(f"v_lshlrev_b32 v{vT1}, 4, v{vT1}")
        a.e(f"v_add_u32 v{vKo[i]}, v{vT0}, v{vT1}")
    sXo, sWo, sKo, sM = 50, 51, 52, 53
    a.e(f"s_mul_i32 s{sXo}, s{sP}, {128*1280}")
    a.e(f"s_lshl_b32 s{sWo}, s{sH}, 8")
    a.e(f"s_lshr_b32 s3, s{sW}, 1")
    a.e(f"s_lshl_b32 s47, s{sP}, 1")
    a.e(f"s_add_u32 s47, s47, s3")
    a.e(f"s_lshl_b32 s47, s47, 5")
    a.e(f"s_add_u32 s47, s47, s{sH}")
    a.e(f"s_lshl_b32 s47, s47, 14")
    a.e(f"s_and_b32 s3, s{sW}, 1")
    a.e(f"s_lshl_b32 s3, s3, 13")
    a.e(f"s_add_u32 s{sKo}, s47, s3")
    sW4096, sW8192 = 54, 55
    a.e(f"s_lshl_b32 s{sW4096}, s{sW}, 12")
    a.e(f"s_lshl_b32 s{sW8192}, s{sW}, 13")

    def dma_stage(st):
        slot = st % 3
        a.e(f"s_add_u32 m0, s{sW4096}, {slot*16384}")
        a.e(f"s_add_u32 s56, s{sXo}, {st*128}")
        for i in range(4):
            a.e(f"buffer_load_dwordx4 v{vXo[i]}, s[{SX}:{SX+3}], s56 offen offset:{1024*i} lds")
        a.e(f"s_add_u32 m0, s{sW4096}, {49152+slot*16384}")
        a.e(f"s_add_u32 s57, s{sWo}, {st*64*8192}")
        for i in range(4):
            a.e(f"buffer_load_dwordx4 v{vWo[i]}, s[{SWQ}:{SWQ+3}], s57 offen offset:{1024*i} lds")
    def dma_kv():
        for grp in range(2):
            a.e(f"s_add_u32 m0, s{sW8192}, {98304+grp*4096}")
            a.e(f"s_add_u32 s56, s{sKo}, {grp*4096}")
            for i in range(4):
                a.e(f"buffer_load_dwordx4 v{vKo[i]}, s[{SK}:{SK+3}], s56 offen offset:{1024*i} lds")
        for grp in range(2):
            a.e(f"s_add_u32 m0, s{sW8192}, {131072+grp*4096}")
            a.e(f"s_add_u32 s56, s{sKo}, {grp*4096}")
            for i in range(4):
                a.e(f"buffer_load_dwordx4 v{vVo}, s[{SV}:{SV+3}], s56 offen offset:{1024*i} lds")
    dma_stage(0); dma_stage(1); dma_stage(2); dma_kv()

    vXa = [26, 27, 28, 29]
    vWa = [30, 31, 32, 33]
    vKa = 34
    vVa = [36, 37, 38, 39]
    hh, i31 = 40, 41
    a.e(f"v_lshrrev_b32 v{hh}, 5, v{vL}")
    a.e(f"v_and_b32 v{i31}, 31, v{vL}")
    a.e(f"s_lshl_b32 s48, s{sW}, 5")
    a.e(f"v_add_u32 v{vT0}, s48, v{i31}")
    a.e(f"v_lshrrev_b32 v{vT1}, 1, v{vT0}")
    a.e(f"v_and_b32 v{vT1}, 7, v{vT1}")
    a.e(f"v_xor_b32 v{vT1}, v{vT1}, v{hh}")
    a.e(f"v_lshlrev_b32 v{vT1}, 4, v{vT1}")
    a.e(f"v_lshlrev_b32 v{vT0}, 7, v{vT0}")
    a.e(f"v_add_u32 v{vXa[0]}, v{vT0}, v{vT1}")
    for kk in range(1, 4):
        a.e(f"v_xor_b32 v{vXa[kk]}, {32*kk}, v{vXa[0]}")
    r_, cc, sub = 42, 43, 44
    a.e(f"v_lshrrev_b32 v{r_}, 2, v{vL}")
    a.e(f"v_and_b32 v{r_}, 3, v{r_}")
    a.e(f"v_and_b32 v{cc}, 3, v{vL}")
    a.e(f"v_lshrrev_b32 v{sub}, 4, v{vL}")
    a.e(f"v_and_b32 v{sub}, 1, v{sub}")
    a.e(f"v_and_b32 v{vT0}, 1, v{cc}")
    a.e(f"v_lshlrev_b32 v{vT0}, 1, v{vT0}")
    a.e(f"v_lshrrev_b32 v{vT1}, 1, v{cc}")
    a.e(f"v_or_b32 v{vT0}, v{vT0}, v{vT1}")
    a.e(f"v_lshlrev_b32 v{vT0}, 3, v{vT0}")
    a.e(f"v_lshlrev_b32 v{vT1}, 5, v{sub}")
    a.e(f"v_add_u32 v{vT0}, v{vT0}, v{vT1}")
    a.e(f"v_lshlrev_b32 v{vT1}, 3, v{hh}")
    a.e(f"v_add_u32 v{vT1}, v{vT1}, v{r_}")
    a.e(f"v_lshlrev_b32 v{vT1}, 8, v{vT1}")
    a.e(f"v_add_u32 v{vT0}, v{vT0}, v{vT1}")
    a.e(f"s_lshr_b32 s3, s{sW}, 1")
    a.e(f"s_lshl_b32 s3, s3, 14")
    a.e(f"s_add_u32 s47, s3, 131072")
    a.e(f"s_add_u32 s48, s3, 98304")
    for t in range(4):
        a.e(f"v_xor_b32 v{vT1}, {t}, v{r_}")
        a.e(f"v_lshlrev_b32 v{vT1}, 6, v{vT1}")
        a.e(f"v_add_u32 v{vT1}, v{vT1}, v{vT0}")
        a.e(f"v_add_u32 v{vWa[t]}, 49152, v{vT1}")
        a.e(f"v_add_u32 v{vVa[t]}, s47, v{vT1}")
    a.e(f"v_and_b32 v{vT0}, 0x13, v{i31}")
    a.e(f"v_and_b32 v{vT1}, 4, v{i31}")
    a.e(f"v_lshlrev_b32 v{vT1}, 1, v{vT1}")
    a.e(f"v_or_b32 v{vT0}, v{vT0}, v{vT1}")
    a.e(f"v_and_b32 v{vT1}, 8, v{i31}")
    a.e(f"v_lshrrev_b32 v{vT1}, 1, v{vT1}")
    a.e(f"v_or_b32 v{vT0}, v{vT0}, v{vT1}")
    a.e(f"v_and_b32 v{vT1}, 15, v{vT0}")
    a.e(f"v_xor_b32 v{vT1}, v{vT1}, v{hh}")
    a.e(f"v_lshlrev_b32 v{vT1}, 4, v{vT1}")
    a.e(f"v_lshlrev_b32 v{vT0}, 8, v{vT0}")
    a.e(f"v_add_u32 v{vT0}, v{vT0}, v{vT1}")
    a.e(f"v_add_u32 v{vKa}, s48, v{vT0}")

    ACC = 64
    AF = [[128, 132, 136, 140], [144, 148, 152, 156]]
    BF = [160, 164]
    def read_frags(st, kk, buf):
        slot = st % 3
        a.e(f"ds_read_b128 {vr(BF[buf],4)}, v{vXa[kk]} offset:{slot*16384}")
        for t in range(4):
            for u in range(2):
                a.e(f"ds_read_b64_tr_b16 {vr(AF[buf][t]+2*u,2)}, v{vWa[t]} offset:{slot*16384+kk*4096+u*1024}")
    a.e("s_waitcnt vmcnt(32)")
    a.e("s_barrier")
    read_frags(0, 0, 0)
    step = 0
    for st in range(10):
        for kk in range(4):
            buf = step & 1
            last_in_stage = (kk == 3)
            if last_in_stage and st < 9:
                if st == 0: n = 8 + 16
                elif st == 1: n = 16 + 8
                elif st <= 7: n = 8
                else: n = 0
                a.e(f"s_waitcnt vmcnt({n}) lgkmcnt(0)")
                a.e("s_barrier")
                if st + 3 <= 9:
                    dma_stage(st + 3)
            else:
                a.e("s_waitcnt lgkmcnt(0)")
            if step < 39:
                nst, nkk = (st, kk + 1) if kk < 3 else (st + 1, 0)
                read_frags(nst, nkk, buf ^ 1)
            for t in range(4):
                c = "0" if step == 0 else vr(ACC + 16*t, 16)
                a.e(f"v_mfma_f32_32x32x16_bf16 {vr(ACC+16*t,16)}, {vr(AF[buf][t],4)}, {vr(BF[buf],4)}, {c}")
            step += 1
    QP = 128
    a.e("s_nop 7"); a.e("s_nop 7")
    for t in range(4):
        for uu in range(2):
            for j in range(4):
                r = 8*uu + 2*j
                a.e(f"v_cvt_pk_bf16_f32 v{QP + (2*t+uu)*4 + j}, v{ACC+16*t+r}, v{ACC+16*t+r+1}")
    S = 160
    KF = 192
    for kk in range(8):
        a.e(f"v_xor_b32 v{vT0}, {32*kk}, v{vKa}")
        for t2 in range(2):
            a.e(f"ds_read_b128 {vr(KF + (t2*8+kk)*4, 4)}, v{vT0} offset:{t2*8192}")
        if kk == 3:
            a.e("s_waitcnt lgkmcnt(0)")
    a.e("s_waitcnt lgkmcnt(0)")
    for kk in range(8):
        for t2 in range(2):
            c = "0" if kk == 0 else vr(S + 16*t2, 16)
            a.e(f"v_mfma_f32_32x32x16_bf16 {vr(S+16*t2,16)}, {vr(KF+(t2*8+kk)*4,4)}, {vr(QP+4*kk,4)}, {c}")
    VF = 64
    for t in range(4):
        for kk in range(4):
            for u in range(2):
                a.e(f"ds_read_b64_tr_b16 {vr(VF+(t*4+kk)*4+2*u,2)}, v{vVa[t]} offset:{kk*4096+u*1024}")
        a.e("s_waitcnt lgkmcnt(4)")
    a.e("s_nop 7"); a.e("s_nop 3")
    m, m2, sm, sm2 = 2, 3, 4, 5
    a.e(f"v_max3_f32 v{m}, v{S}, v{S+1}, v{S+2}")
    for r in range(3, 31, 2):
        a.e(f"v_max3_f32 v{m}, v{m}, v{S+r}, v{S+r+1}")
    a.e(f"v_max_f32 v{m}, v{m}, v{S+31}")
    a.e(f"v_mov_b32 v{m2}, v{m}")
    a.e("s_nop 1")
    a.e(f"v_permlane32_swap_b32 v{m}, v{m2}")
    a.e(f"v_max_f32 v{m}, v{m}, v{m2}")
    import math
    cs = (128 ** -0.5) * math.log2(math.e)
    import struct
    cbits = struct.unpack("<I", struct.pack("<f", cs))[0]
    a.e(f"s_mov_b32 s58, {hex(cbits)}")
    a.e(f"v_mul_f32 v{m}, s58, v{m}")
    for r in range(32):
        a.e(f"v_fma_f32 v{S+r}, v{S+r}, s58, -v{m}")
    for r in range(32):
        a.e(f"v_exp_f32 v{S+r}, v{S+r}")
    a.e("s_nop 0")
    a.e(f"v_add_f32 v{sm}, v{S}, v{S+1}")
    for r in range(2, 32):
        a.e(f"v_add_f32 v{sm}, v{sm}, v{S+r}")
    a.e(f"v_mov_b32 v{sm2}, v{sm}")
    a.e("s_nop 1")
    a.e(f"v_permlane32_swap_b32 v{sm}, v{sm2}")
    a.e(f"v_add_f32 v{sm}, v{sm}, v{sm2}")
    a.e(f"v_rcp_f32 v{sm}, v{sm}")
    a.e("s_nop 0")
    for r in range(32):
        a.e(f"v_mul_f32 v{S+r}, v{S+r}, v{sm}")
    PP = 128
    for t2 in range(2):
        for uu in range(2):
            for j in range(4):
                r = 8*uu + 2*j
                a.e(f"v_cvt_pk_bf16_f32 v{PP + (2*t2+uu)*4 + j}, v{S+16*t2+r}, v{S+16*t2+r+1}")
    O = 192
    a.e("s_waitcnt lgkmcnt(0)")
    a.e("s_nop 1")
    for kk in range(4):
        for t in range(4):
            c = "0" if kk == 0 else vr(O + 16*t, 16)
            a.e(f"v_mfma_f32_32x32x16_bf16 {vr(O+16*t,16)}, {vr(VF+(t*4+kk)*4,4)}, {vr(PP+4*kk,4)}, {c}")
    a.e(f"v_lshrrev_b32 v{vT0}, 4, v{i31}")
    a.e(f"v_lshlrev_b32 v{vT0}, 10, v{vT0}")
    a.e(f"v_lshlrev_b32 v{vT1}, 8, v{hh}")
    a.e(f"v_add_u32 v{vT0}, v{vT0}, v{vT1}")
    a.e(f"v_lshlrev_b32 v{vT1}, 4, v{l15}")
    a.e(f"v_add_u32 v{vT0}, v{vT0}, v{vT1}")
    a.e(f"s_lshl_b32 s47, s{sP}, 2")
    a.e(f"s_add_u32 s47, s47, s{sW}")
    a.e(f"s_lshl_b32 s47, s47, 18")
    a.e(f"s_lshl_b32 s3, s{sH}, 13")
    a.e(f"s_add_u32 s47, s47, s3")
    a.e("s_nop 7")
    OP = 128
    for t in range(4):
        for uu in range(2):
            for j in range(4):
                r = 8*uu + 2*j
                a.e(f"v_cvt_pk_bf16_f32 v{OP + (2*t+uu)*4 + j}, v{O+16*t+r}, v{O+16*t+r+1}")
    for t in range(4):
        a.e(f"s_add_u32 s48, s47, {t*2048}")
        for uu in range(2):
            a.e(f"buffer_store_dwordx4 {vr(OP+(2*t+uu)*4,4)}, v{vT0}, s[{SWS}:{SWS+3}], s48 offen offset:{uu*512}")
    if STAMP:
        a.e("s_waitcnt vmcnt(0)")
        a.e(f"s_cmp_lg_u32 s{sW}, 0")
        a.e("s_cbranch_scc1 P1_END")
        stamp_end(a, SDBG, 60, 62, 2, 3, 0)
    a.label("P1_END")
    a.e("s_endpgm")
    return name

def p2(a):
    name = "p2_kernel"
    kernel_begin(a, name)
    a.e("s_cmp_ge_u32 s2, 256")
    a.e("s_cbranch_scc1 P2_END")
    load_kernargs(a)
    stamp_begin(a, None, 60, None)
    SWO, SOUT, SWS, SDBG = 20, 24, 28, 32
    vL, vT0, vT1, vT2 = 1, 2, 3, 4
    a.e(f"v_and_b32 v{vL}, 63, v0")
    a.e(f"v_lshrrev_b32 v{vT0}, 6, v0")
    a.e("s_nop 0")
    sW, sQT, sNT = 44, 45, 46
    a.e(f"v_readfirstlane_b32 s{sW}, v{vT0}")
    a.e("s_and_b32 s3, s2, 7")
    a.e("s_lshr_b32 s47, s2, 3")
    a.e("s_lshr_b32 s48, s3, 1")
    a.e("s_lshl_b32 s48, s48, 3")
    a.e("s_lshr_b32 s49, s47, 2")
    a.e(f"s_add_u32 s{sQT}, s48, s49")
    a.e("s_and_b32 s48, s3, 1")
    a.e("s_lshl_b32 s48, s48, 2")
    a.e("s_and_b32 s49, s47, 3")
    a.e(f"s_add_u32 s{sNT}, s48, s49")
    a.e("s_waitcnt lgkmcnt(0)")
    srd(a, SWO, 12, W_BYTES); srd(a, SOUT, 14, OUT_BYTES); srd(a, SWS, 18, WS_O_BYTES); srd(a, SDBG, 16, 256)
    vWo = [8, 9, 10, 11, 12]
    a.e("s_mov_b32 s48, 6554")
    a.e("s_mov_b32 s49, 1280")
    for i in range(5):
        a.e(f"v_add_u32 v{vT0}, {64*i}, v{vL}")
        a.e(f"v_mul_lo_u32 v{vT1}, v{vT0}, s48")
        a.e(f"v_lshrrev_b32 v{vT1}, 16, v{vT1}")
        a.e(f"v_mul_u32_u24 v{vT2}, 10, v{vT1}")
        a.e(f"v_sub_u32 v{vT0}, v{vT0}, v{vT2}")
        a.e(f"v_lshlrev_b32 v{vT0}, 4, v{vT0}")
        a.e(f"v_and_b32 v{vT2}, 0x13, v{vT1}")
        a.e(f"v_and_b32 v5, 4, v{vT1}")
        a.e(f"v_lshlrev_b32 v5, 1, v5")
        a.e(f"v_or_b32 v{vT2}, v{vT2}, v5")
        a.e(f"v_and_b32 v5, 8, v{vT1}")
        a.e(f"v_lshrrev_b32 v5, 1, v5")
        a.e(f"v_or_b32 v{vT2}, v{vT2}, v5")
        a.e(f"v_mul_lo_u32 v{vT2}, v{vT2}, s49")
        a.e(f"v_add_u32 v{vT0}, v{vT0}, v{vT2}")
        if i < 4:
            a.e(f"v_subrev_u32 v{vWo[i]}, {1024*i}, v{vT0}")
        else:
            a.e(f"v_mov_b32 v{vWo[i]}, v{vT0}")
    vOo = 13
    a.e(f"v_lshlrev_b32 v{vOo}, 4, v{vL}")
    vA = 14
    a.e(f"v_lshrrev_b32 v{vT0}, 5, v{vL}")
    a.e(f"v_lshlrev_b32 v{vT0}, 4, v{vT0}")
    a.e(f"v_lshrrev_b32 v{vT1}, 4, v{vL}")
    a.e(f"v_and_b32 v{vT1}, 1, v{vT1}")
    a.e(f"v_lshlrev_b32 v{vT1}, 2, v{vT1}")
    a.e(f"v_add_u32 v{vT0}, v{vT0}, v{vT1}")
    a.e(f"v_lshrrev_b32 v{vT1}, 2, v{vL}")
    a.e(f"v_and_b32 v{vT1}, 3, v{vT1}")
    a.e(f"v_add_u32 v{vT0}, v{vT0}, v{vT1}")
    a.e(f"v_mul_u32_u24 v{vT0}, 160, v{vT0}")
    a.e(f"v_and_b32 v{vT1}, 3, v{vL}")
    a.e(f"v_lshlrev_b32 v{vT1}, 3, v{vT1}")
    a.e(f"v_add_u32 v{vT0}, v{vT0}, v{vT1}")
    sLB = 50
    a.e(f"s_mul_i32 s{sLB}, s{sW}, 40960")
    a.e(f"v_add_u32 v{vA}, s{sLB}, v{vT0}")
    sWoff, sOoff = 51, 52
    a.e(f"s_mul_i32 s{sWoff}, s{sW}, {32*32*1280}")
    a.e(f"s_mul_i32 s3, s{sNT}, 160")
    a.e(f"s_add_u32 s{sWoff}, s{sWoff}, s3")
    a.e(f"s_lshl_b32 s{sOoff}, s{sQT}, 18")
    a.e(f"s_lshl_b32 s3, s{sW}, 16")
    a.e(f"s_add_u32 s{sOoff}, s{sOoff}, s3")
    OB = 32
    AF = 96
    ACC = 128
    def loads(s):
        slot = s % 8
        a.e(f"s_add_u32 m0, s{sLB}, {slot*5120}")
        a.e(f"s_add_u32 s56, s{sWoff}, {s*32*1280}")
        for i in range(4):
            a.e(f"buffer_load_dwordx4 v{vWo[i]}, s[{SWO}:{SWO+3}], s56 offen offset:{1024*i} lds")
        a.e(f"s_add_u32 m0, s{sLB}, {slot*5120+4096}")
        a.e(f"s_add_u32 s57, s{sOoff}, {s*2048}")
        a.e(f"buffer_load_dwordx4 v{vWo[4]}, s[{SWO}:{SWO+3}], s56 offen lds")
        for q in range(2):
            a.e(f"buffer_load_dwordx4 {vr(OB+slot*8+4*q,4)}, v{vOo}, s[{SWS}:{SWS+3}], s57 offen offset:{1024*q}")
    for s in range(7):
        loads(s)
    for s in range(32):
        slot = s % 8
        n = 7 * min(6, 31 - s)
        a.e(f"s_waitcnt vmcnt({n})")
        for nb in range(5):
            for u in range(2):
                a.e(f"ds_read_b64_tr_b16 {vr(AF+4*nb+2*u,2)}, v{vA} offset:{slot*5120+u*1280+32*nb}")
        if s + 7 < 32:
            loads(s + 7)
        a.e("s_waitcnt lgkmcnt(0)")
        for nb in range(5):
            for q in range(2):
                acc = vr(ACC + (nb*2+q)*4, 4)
                c = "0" if s == 0 else acc
                a.e(f"v_mfma_f32_16x16x32_bf16 {acc}, {vr(AF+4*nb,4)}, {vr(OB+slot*8+4*q,4)}, {c}")
    a.e("s_nop 7")
    a.e(f"v_lshlrev_b32 v{vT0}, 4, v{vL}")
    a.e(f"v_add_u32 v{vT1}, s{sLB}, v{vT0}")
    for ti in range(10):
        a.e(f"ds_write_b128 v{vT1}, {vr(ACC+4*ti,4)} offset:{ti*1024}")
    a.e("s_waitcnt lgkmcnt(0)")
    a.e("s_barrier")
    a.e(f"s_and_b32 s47, s{sW}, 1")
    a.e(f"s_lshl_b32 s47, s47, 4")
    a.e(f"s_lshl_b32 s48, s{sQT}, 5")
    a.e(f"s_add_u32 s47, s47, s48")
    a.e(f"v_and_b32 v5, 15, v{vL}")
    a.e(f"v_add_u32 v5, s47, v5")
    a.e(f"s_mov_b32 s49, 1280")
    a.e(f"v_mul_lo_u32 v5, v5, s49")
    a.e(f"v_lshrrev_b32 v6, 4, v{vL}")
    a.e(f"v_lshlrev_b32 v6, 3, v6")
    a.e(f"v_add_u32 v5, v5, v6")
    a.e(f"s_mul_i32 s47, s{sNT}, 160")
    a.e(f"s_lshr_b32 s48, s{sW}, 1")
    a.e(f"s_lshl_b32 s48, s48, 5")
    a.e(f"s_add_u32 s47, s47, s48")
    a.e(f"s_lshl_b32 s48, s{sW}, 10")
    a.e(f"v_add_u32 v{vT0}, s48, v{vT0}")
    for mm in range(3):
        if mm == 2:
            a.e(f"s_cmp_ge_u32 s{sW}, 2")
            a.e("s_cbranch_scc1 P2_DONE")
        for w2 in range(4):
            a.e(f"ds_read_b128 {vr(32+4*w2,4)}, v{vT0} offset:{mm*4096}")
            if w2 < 3:
                a.e(f"v_add_u32 v{vT0}, 40960, v{vT0}")
        a.e(f"v_subrev_u32 v{vT0}, {3*40960}, v{vT0}")
        a.e("s_waitcnt lgkmcnt(0)")
        for r in range(4):
            a.e(f"v_add_f32 v{32+r}, v{32+r}, v{36+r}")
            a.e(f"v_add_f32 v{40+r}, v{40+r}, v{44+r}")
            a.e(f"v_add_f32 v{32+r}, v{32+r}, v{40+r}")
        a.e(f"v_cvt_pk_bf16_f32 v48, v32, v33")
        a.e(f"v_cvt_pk_bf16_f32 v49, v34, v35")
        a.e(f"s_add_u32 s48, s47, {mm*64}")
        a.e(f"buffer_store_dwordx2 v[48:49], v5, s[{SOUT}:{SOUT+3}], s48 offen")
    a.label("P2_DONE")
    if STAMP:
        a.e("s_waitcnt vmcnt(0)")
        a.e(f"s_cmp_lg_u32 s{sW}, 0")
        a.e("s_cbranch_scc1 P2_END")
        stamp_end(a, SDBG, 60, 62, 2, 3, 0)
    a.label("P2_END")
    a.e("s_endpgm")
    return name

def main(out):
    a = Asm()
    a.raw(HEADER.rstrip())
    a.raw("; @launch kernel=p1_kernel grid=(256,1,1) block=(256,1,1) lds=163840")
    a.raw("; @launch kernel=p2_kernel grid=(256,1,1) block=(256,1,1) lds=163840")
    a.raw('.amdgcn_target "amdgcn-amd-amdhsa--gfx950"')
    n1 = p1(a)
    n2 = p2(a)
    kernel_desc(a, n1, 256, 256)
    kernel_desc(a, n2, 256, 256)
    open(out, "w").write(a.text())

if __name__ == "__main__":
    if len(sys.argv) > 2: STAMP = sys.argv[2] != "0"
    main(sys.argv[1])
```
